```python
import torch

def _softmax(x, axis=-1):
    return torch.softmax(x, dim=axis)
def _gelu(x):
    return torch.nn.functional.gelu(x, approximate="tanh")
def _silu(x):
    return torch.nn.functional.silu(x)
def _sigmoid(x):
    return torch.sigmoid(x)
def _layernorm(x, axis=-1, eps=1e-5):
    m = x.mean(dim=axis, keepdim=True)
    v = x.var(dim=axis, keepdim=True, unbiased=False)
    return (x - m) / torch.sqrt(v + eps)
def _scatter_add(tgt, idx, src, axis=0):
    return tgt.clone().index_add_(axis, idx, src)
def _segment_sum(src, seg, n):
    out = torch.zeros((n,) + src.shape[1:], dtype=src.dtype)
    return out.index_add_(0, seg, src)
def _pad(x, pw):
    flat = tuple(v for pair in reversed(pw) for v in pair)
    return torch.nn.functional.pad(x, flat)

kernel_name = 'sequential_preLN__sliding_block_cached__dense_activation_gelu__decode'

def setup_inputs():

    _w = (lambda a: (lambda t: t.to(torch.bfloat16) if t.is_floating_point() else t)(torch.as_tensor(a)))
    def _A_setup():
        B, Sq, D = 1, 1, 512
        Hq, Hkv, Sk, Dh = 32, 32, 16384, 128
        assert Hq % Hkv == 0, (Hq, Hkv)
        return {
            "x": _w((lambda *s: torch.randn(*s, dtype=torch.bfloat16) * 0.1)(B, Sq, D)),
            "k_cache": _w((lambda *s: torch.randn(*s, dtype=torch.bfloat16) * 1.6)(B, Hkv, Sk, Dh)),
            "v_cache": _w((lambda *s: torch.randn(*s, dtype=torch.bfloat16) * 1.6)(B, Hkv, Sk, Dh)),
            "wq": _w((lambda *s: torch.randn(*s, dtype=torch.bfloat16) * 1.6)(D, Hq * Dh) * (D ** -0.5)),
            "wo": _w((lambda *s: torch.randn(*s, dtype=torch.bfloat16) * 1.6)(Hq * Dh, D) * ((Hq * Dh) ** -0.5)),
        }
    _A_in = _A_setup()

    def _B_setup():
        B, S, D, F = 1, 1, 512, 1376
        return {
            "x": _w((lambda *s: torch.randn(*s, dtype=torch.bfloat16) * 0.1)(B, S, D)),
            "w1": _w((lambda *s: torch.randn(*s, dtype=torch.bfloat16) * 3.2)(D, F) * (D ** -0.5)),
            "b1": _w((lambda *s: torch.randn(*s, dtype=torch.bfloat16) * 3.2)(F) * 0.01),
            "w2": _w((lambda *s: torch.randn(*s, dtype=torch.bfloat16) * 3.2)(F, D) * (F ** -0.5)),
            "b2": _w((lambda *s: torch.randn(*s, dtype=torch.bfloat16) * 3.2)(D) * 0.01),
        }
    _B_in = _B_setup()

    return {
        "A_x": _A_in["x"],
        "A_k_cache": _A_in["k_cache"],
        "A_v_cache": _A_in["v_cache"],
        "A_wq": _A_in["wq"],
        "A_wo": _A_in["wo"],
        "B_x": _B_in["x"],
        "B_w1": _B_in["w1"],
        "B_b1": _B_in["b1"],
        "B_w2": _B_in["w2"],
        "B_b2": _B_in["b2"],
    }

def reference(A_x, A_k_cache, A_v_cache, A_wq, A_wo, B_x, B_w1, B_b1, B_w2, B_b2):
    def _A_ref(x, k_cache, v_cache, wq, wo):
        B, Sq, D = x.shape
        Hq, Dh = 32, 128
        Hkv, Sk = k_cache.shape[1], k_cache.shape[2]
        W = min(4096, max(256, Sk // 4))
        rep = Hq // Hkv
        q = (lambda x, *d: x.permute(*d))((x @ wq).reshape(B, Sq, Hq, Dh), 0, 2, 1, 3)
        k = (lambda x, n, axis: torch.repeat_interleave(x, n, dim=axis))(k_cache[:, :, Sk - W:, :], rep, axis=1)
        v = (lambda x, n, axis: torch.repeat_interleave(x, n, dim=axis))(v_cache[:, :, Sk - W:, :], rep, axis=1)
        scores = torch.einsum("bhqd,bhkd->bhqk", q, k) * (Dh ** -0.5)
        p = _softmax(scores, axis=-1)
        o = torch.einsum("bhqk,bhkd->bhqd", p, v)
        return (lambda x, *d: x.permute(*d))(o, 0, 2, 1, 3).reshape(B, Sq, Hq * Dh) @ wo

    def _B_ref(x, w1, b1, w2, b2):
        h = torch.einsum("bsd,df->bsf", x, w1) + b1
        h = _gelu(h)
        return torch.einsum("bsf,fd->bsd", h, w2) + b2

    x = A_x
    h = x + _A_ref(_layernorm(x, axis=-1), A_k_cache, A_v_cache, A_wq, A_wo)
    h2 = h + _B_ref(_layernorm(h, axis=-1), B_w1, B_b1, B_w2, B_b2)
    return h2
```

```python
import re

TRANS = ("v_exp_f32", "v_log_f32", "v_rcp_f32", "v_rsq_f32", "v_sqrt_f32", "v_sin_f32", "v_cos_f32")

def regs_of(tok):
    tok = tok.strip()
    neg = tok.lstrip("-")
    if neg.startswith("abs(") or neg.startswith("|"):
        neg = neg.replace("abs(", "").replace(")", "").replace("|", "")
    tok = neg
    m = re.fullmatch(r"([vsa])(\d+)", tok)
    if m: return [(m.group(1), int(m.group(2)))]
    m = re.fullmatch(r"([vsa])\[(\d+):(\d+)\]", tok)
    if m: return [(m.group(1), i) for i in range(int(m.group(2)), int(m.group(3)) + 1)]
    if tok == "vcc": return [("s", 106), ("s", 107)]
    if tok == "vcc_lo": return [("s", 106)]
    if tok == "vcc_hi": return [("s", 107)]
    if tok == "exec": return [("s", 126), ("s", 127)]
    if tok == "m0": return [("s", 124)]
    return []

class Ins:
    __slots__ = ("op", "rd", "wr", "kind", "dpp", "pos", "srcc", "ab", "stdata", "passes")

class Asm:
    def __init__(self):
        self.lines = []
        self.hist = []
        self.pos = 0
        self.maxv = 0
        self.maxs = 0

    def raw(self, text):
        self.lines.append(text)

    def label(self, name):
        self.lines.append(name + ":")

    def comment(self, t):
        self.lines.append("  ; " + t)

    def parse(self, text):
        t = text.split(";")[0].strip()
        parts = t.split(None, 1)
        op = parts[0]
        rest = parts[1] if len(parts) > 1 else ""
        ops = []; depth = 0; cur = ""
        for ch in rest:
            if ch == "[": depth += 1
            if ch == "]": depth -= 1
            if ch == "," and depth == 0:
                ops.append(cur.strip()); cur = ""
            else:
                cur += ch
        if cur.strip(): ops.append(cur.strip())
        mods = ""
        if ops:
            lp = ops[-1].split(None, 1)
            ops[-1] = lp[0]
            mods = lp[1] if len(lp) > 1 else ""
        i = Ins(); i.op = op; i.rd = []; i.wr = []; i.dpp = False; i.srcc = []; i.ab = []; i.stdata = []; i.passes = 0
        R = [regs_of(o) for o in ops]
        base = re.sub(r"_(e32|e64|dpp|sdwa)$", "", op)
        if op.startswith("v_mfma"):
            i.kind = "mfma"; i.wr = R[0]; i.ab = R[1] + R[2]; i.srcc = R[3]; i.rd = i.ab + i.srcc
            i.passes = 4 if "16x16x32" in op else 8
        elif op.startswith("v_"):
            i.kind = "valu"
            i.dpp = op.endswith("_dpp") or "quad_perm" in mods or "row_" in mods
            if base.startswith("v_permlane"):
                i.kind = "perm"; i.wr = R[0] + R[1]; i.rd = R[0] + R[1]
            elif base in ("v_readlane_b32", "v_readfirstlane_b32"):
                i.kind = "rdlane"; i.wr = R[0]; i.rd = sum(R[1:], [])
            elif base.startswith("v_cmpx"):
                i.wr = R[0] + regs_of("exec"); i.rd = sum(R[1:], [])
            elif re.match(r"v_(add|sub|subrev)_co_|v_(addc|subb|subbrev)_co_|v_div_scale|v_mad_u64", base):
                i.wr = R[0] + R[1]; i.rd = sum(R[2:], [])
            else:
                i.wr = R[0]; i.rd = sum(R[1:], [])
                if base.startswith("v_dot2c") or base.startswith("v_fmac") or base.startswith("v_pk_fmac"):
                    i.rd = i.rd + R[0]
                if base.startswith("v_cndmask") and len(ops) == 3:
                    i.rd = i.rd + regs_of("vcc")
            if base.startswith("v_dot"):
                i.kind = "dot"
                i.srcc = R[0] if base.startswith("v_dot2c") else (R[3] if len(R) > 3 else [])
                i.ab = R[1] + R[2]
            if base in TRANS: i.kind = "trans"
        elif op.startswith("buffer_") or op.startswith("global_"):
            i.kind = "vmem"
            isload = "_load" in op
            if op.startswith("buffer_"):
                if isload and "lds" not in mods.split():
                    i.wr = R[0]; i.rd = sum(R[1:], [])
                elif isload:
                    i.rd = sum(R, [])
                else:
                    i.rd = sum(R, []); i.stdata = R[0]
                    if "atomic" in op and "sc0" in mods.split(): i.wr = R[0]
            else:
                if isload:
                    i.wr = R[0]; i.rd = sum(R[1:], [])
                else:
                    i.rd = sum(R, []); i.stdata = R[1]
            if len(i.stdata) < 3: i.stdata = []
        elif op.startswith("ds_"):
            i.kind = "ds"
            if op.startswith("ds_read") or "permute" in op or "swizzle" in op or "_rtn_" in op:
                i.wr = R[0]; i.rd = sum(R[1:], [])
            else:
                i.rd = sum(R, [])
        elif op.startswith("s_"):
            i.kind = "salu"
            if re.match(r"s_(cmp|cbranch|branch|waitcnt|nop|barrier|sleep|setprio|endpgm|bitcmp)", op):
                i.rd = sum(R, [])
            else:
                i.wr = R[0] if R else []; i.rd = sum(R[1:], [])
                if "saveexec" in op: i.wr = i.wr + regs_of("exec")
        else:
            raise ValueError("unknown op " + text)
        for k, n in i.rd + i.wr:
            if k == "v": self.maxv = max(self.maxv, n)
            if k == "s" and n < 102: self.maxs = max(self.maxs, n)
        return i

    def need(self, p, c):
        n = 0
        pw = set(p.wr); cr = set(c.rd); cw = set(c.wr)
        pv = {r for r in pw if r[0] in "va"}; ps = {r for r in pw if r[0] == "s"}
        valu_like = ("valu", "dot", "trans", "perm", "rdlane")
        is_valu_p = p.kind in valu_like
        is_valu_c = c.kind in valu_like
        if is_valu_p:
            if pv & cr:
                if c.dpp: n = max(n, 2)
                if c.kind == "perm": n = max(n, 2)
                if c.kind == "rdlane": n = max(n, 1)
                if c.kind == "mfma": n = max(n, 2)
                if p.kind == "trans" and c.kind != "trans": n = max(n, 1)
            if ps & cr:
                if c.kind == "rdlane": n = max(n, 4)
                elif is_valu_c or c.kind == "mfma": n = max(n, 2)
                elif c.kind == "vmem": n = max(n, 5)
                elif c.kind == "salu": n = max(n, 1)
            if ("s", 126) in ps:
                if c.dpp: n = max(n, 5)
                if c.kind in ("perm", "rdlane", "mfma"): n = max(n, 4)
        if p.kind == "dot":
            if pv & (cr | cw):
                same = c.kind == "dot" and re.sub(r"_(e32|e64|dpp)$", "", c.op) == re.sub(r"_(e32|e64|dpp)$", "", p.op)
                if same and not (pv & set(c.ab)):
                    pass
                else:
                    n = max(n, 3)
        if p.kind == "mfma":
            P = p.passes
            tab_ab = {2: 5, 4: 8, 8: 12, 16: 20}[P]
            if c.kind == "mfma":
                if pv & set(c.ab): n = max(n, tab_ab)
                if pv & set(c.srcc):
                    if not (set(c.srcc) == pv and c.passes == P): n = max(n, {2: 4, 4: 6, 8: 10, 16: 18}[P])
                elif pv & cw: n = max(n, tab_ab)
            elif pv & (cr | cw):
                n = max(n, tab_ab)
            if is_valu_c and set(p.srcc) & cw:
                n = max(n, {2: 1, 4: 3, 8: 7, 16: 15}[P])
        if p.stdata and set(p.stdata) & cw:
            n = max(n, 2)
        if p.kind == "salu" and ("s", 124) in pw and c.kind in ("vmem", "ds"):
            n = max(n, 1)
        return n

    def I(self, text):
        c = self.parse(text)
        if c.op == "s_nop":
            k = int(text.split()[1]) + 1
            self.lines.append("  " + text); self.pos += k
            return
        req = 0
        for p in self.hist:
            d = self.pos - p.pos - 1
            req = max(req, self.need(p, c) - d)
        while req > 0:
            k = min(req, 16)
            self.lines.append(f"  s_nop {k-1}")
            self.pos += k; req -= k
        c.pos = self.pos
        self.pos += 1
        self.hist.append(c)
        self.hist = [h for h in self.hist if self.pos - h.pos <= 24]
        self.lines.append("  " + text)

    def M(self, block):
        for ln in block.strip().split("\n"):
            ln = ln.strip()
            if not ln or ln.startswith(";"): continue
            if ln.endswith(":"): self.label(ln[:-1])
            else: self.I(ln)

    def save(self):
        return (list(self.hist), self.pos)

    def restore(self, st):
        self.hist = list(st[0]); self.pos = st[1]

    def text(self):
        return "\n".join(self.lines) + "\n"

import copy
def _merge(self, st):
    shift = self.pos - st[1]
    for h in st[0]:
        c = copy.copy(h); c.pos = h.pos + shift
        self.hist.append(c)
Asm.merge = _merge
```

```python
import sys
sys.path.insert(0, "dev")
from asmlib import Asm
NAME = "sequential_preLN__sliding_block_cached__dense_activation_gelu__decode"

HEADER = open("cdna_kernels/%s.s.ref" % NAME).read().split("; Override launch geometry")[0]

WS_A = 0x0
WS_B = 0x40000
WS_C = 0x50000
WS_STAMP = 0x100000
WS_SIZE = 0x80000
L_PART = 0x0
L_CTR = 0x2000
L_LSUM = 0x2040
L_G = 0x2080
L_Z = 0x2100
L_H = 0x2900
L_T = 0x3200
LDS_BYTES = L_T + 16 * 516 * 4

DPP = "row_mask:0xf bank_mask:0xf"
LOG2E = 0x3fb8aa3b
SCALE = 0x3db504f3
SPIN_MAX = 1 << 16

def f32bits(x):
    import struct
    return struct.unpack("<I", struct.pack("<f", x))[0]

def gen(stamps=False, amul=3, bmul=5, late_scores=True, sleep=1):
    a = Asm(); I = a.I; M = a.M
    nst = [0]
    def stamp():
        if stamps:
            k = 64 + 2 * nst[0]; nst[0] += 1
            I(f"s_memrealtime s[{k}:{k+1}]")
            I("s_waitcnt lgkmcnt(0)")
    def stamp_at(n):
        if stamps:
            k = 64 + 2 * n
            I(f"s_memrealtime s[{k}:{k+1}]")
            I("s_waitcnt lgkmcnt(0)")
    NST = 16
    def finish():
        if stamps:
            I("s_branch L_stamps")
        else:
            I("s_endpgm")

    def srd(d, lo, hi, n):
        I(f"s_mov_b32 s{d}, s{lo}")
        I(f"s_and_b32 s{d+1}, s{hi}, 0xffff")
        I(f"s_mov_b32 s{d+2}, {n}")
        I(f"s_mov_b32 s{d+3}, 0x20000")

    def row_allreduce(op, regs):
        for ctl in ("quad_perm:[1,0,3,2]", "quad_perm:[2,3,0,1]", "row_half_mirror", "row_mirror"):
            for r in regs:
                I(f"{op}_dpp v{r}, v{r}, v{r} {ctl} {DPP}")

    def wave_sum_to_sgpr(regs, sregs):
        row_allreduce("v_add_f32", regs)
        for r in regs: I(f"v_add_f32_dpp v{r}, v{r}, v{r} row_bcast:15 row_mask:0xa bank_mask:0xf")
        for r in regs: I(f"v_add_f32_dpp v{r}, v{r}, v{r} row_bcast:31 row_mask:0xc bank_mask:0xf")
        for r, s in zip(regs, sregs): I(f"v_readlane_b32 s{s}, v{r}, 63")

    def bf16r(dst, src):
        I(f"v_cvt_pk_bf16_f32 v{dst}, v{src}, v{src}")
        I(f"v_and_b32 v{dst}, 0xffff0000, v{dst}")

    def ln_finish(vs, vq, t0, t1):
        bf16r(vq, vq)
        bf16r(vs, vs)
        I(f"v_add_f32 v{vq}, {f32bits(1e-5):#x}, v{vq}")
        bf16r(vq, vq)
        I(f"v_sqrt_f32 v{vq}, v{vq}")
        bf16r(vq, vq)
        I(f"v_rcp_f32 v{vq}, v{vq}")

    def reduce8_scatter(r):
        for i in range(4): I(f"v_add_f32_dpp v{r+i}, v{r+i}, v{r+i} row_ror:8 {DPP}")
        I(f"v_permlane16_swap_b32 v{r}, v{r+1}")
        I(f"v_permlane16_swap_b32 v{r+2}, v{r+3}")
        I(f"v_add_f32 v{r}, v{r}, v{r+1}")
        I(f"v_add_f32 v{r+2}, v{r+2}, v{r+3}")
        I(f"v_permlane32_swap_b32 v{r}, v{r+2}")
        I(f"v_add_f32 v{r}, v{r}, v{r+2}")

    a.raw(HEADER.rstrip())
    a.raw(f"; @launch grid=(256,1,1) block=(1024,1,1) lds={LDS_BYTES}")
    a.raw('.amdgcn_target "amdgcn-amd-amdhsa--gfx950"')
    a.raw(".text")
    a.raw(f".globl {NAME}_kernel")
    a.raw(".p2align 8")
    a.raw(f".type {NAME}_kernel,@function")
    a.label(f"{NAME}_kernel")
    WQ, K, V = 32, 64, 96
    if stamps:
        I("s_memrealtime s[64:65]"); nst[0] = 1
    M(f"""
    s_cmp_ge_u32 s2, 256
    s_cbranch_scc1 L_end
    s_load_dwordx16 s[4:19], s[0:1], 0
    s_load_dwordx8 s[20:27], s[0:1], 64
    s_load_dwordx2 s[28:29], s[0:1], 96
    s_setprio 3
    v_lshrrev_b32 v13, 6, v0
    v_and_b32 v1, 63, v0
    v_mov_b32 v14, 0
    v_readfirstlane_b32 s3, v13
    v_mov_b32 v15, 0xff800000
    v_mov_b32 v16, {L_CTR}
    ds_write_b64 v16, v[14:15]
    s_and_b32 s30, s2, 7
    s_lshr_b32 s31, s2, 3
    s_and_b32 s32, s31, 3
    s_lshr_b32 s33, s31, 2
    s_lshl_b32 s34, s30, 2
    s_add_u32 s34, s34, s32
    v_lshlrev_b32 v2, 4, v1
    v_lshrrev_b32 v17, 4, v1
    v_and_b32 v18, 15, v1
    v_lshlrev_b32 v3, 13, v17
    v_lshl_add_u32 v3, v18, 4, v3
    """)
    M(f"""
    s_lshl_b32 s35, s34, 22
    s_lshl_b32 s36, s33, 17
    s_add_u32 s35, s35, s36
    s_add_u32 s35, s35, 0x300000
    s_mul_i32 s36, s2, {bmul}
    s_mul_i32 s37, s3, {8*amul}
    s_add_u32 s36, s36, s37
    s_lshl_b32 s37, s3, 18
    s_lshl_b32 s38, s34, 8
    s_add_u32 s37, s37, s38
    """)
    for t in range(8):
        I(f"s_add_u32 s{40+t}, s36, {t*amul}")
        I(f"s_and_b32 s{40+t}, s{40+t}, 127")
        I(f"s_lshl_b32 s{40+t}, s{40+t}, 10")
    M(f"""
    v_and_b32 v19, 7, v18
    v_lshl_add_u32 v19, v19, 2, v17
    s_lshl_b32 s38, s3, 5
    v_add_lshl_u32 v19, v19, s38, 1
    """)
    M(f"""
    v_and_b32 v20, 1, v18
    v_lshlrev_b32 v20, 4, v20
    v_mov_b32 v21, 0xffff
    v_lshlrev_b32 v21, v20, v21
    v_lshrrev_b32 v20, 1, v18
    """)
    for r in range(4):
        I(f"v_cmp_eq_u32 vcc, {r}, v20")
        I(f"v_cndmask_b32 v{4+r}, 0, v21, vcc")
    I("s_waitcnt lgkmcnt(0)")
    I("s_barrier")
    M(f"""
    global_load_dwordx4 v[8:11], v2, s[4:5]
    global_load_ushort v12, v19, s[4:5]
    s_add_u32 s48, s6, s35
    s_addc_u32 s49, s7, 0
    s_and_b32 s49, s49, 0xffff
    s_mov_b32 s50, 0x20000
    s_mov_b32 s51, 0x20000
    """)
    srd(56, 10, 11, 0x400000)
    srd(60, 28, 29, WS_SIZE)
    M(f"""
    s_add_u32 s52, s8, s35
    s_addc_u32 s53, s9, 0
    s_and_b32 s53, s53, 0xffff
    s_mov_b32 s54, 0x20000
    s_mov_b32 s55, 0x20000
    s_lshl_b32 s39, s34, 3
    s_add_u32 s39, s39, s33
    s_lshl_b32 s39, s39, 10
    """)
    M(f"""
    s_mul_i32 s98, s30, 43
    s_add_u32 s99, s98, 43
    s_lshr_b32 s98, s98, 3
    s_lshr_b32 s99, s99, 3
    s_add_u32 s98, s98, s31
    s_cmp_lt_u32 s98, s99
    s_cselect_b32 s98, s98, -1
    """)
    I("s_cmp_lg_u32 s3, 15")
    I("s_cbranch_scc1 L_noclear")
    st = a.save()
    M(f"""
    v_mov_b32 v20, -1
    v_mov_b32 v21, -1
    v_mov_b32 v22, -1
    v_mov_b32 v23, -1
    buffer_store_dwordx4 v[20:23], v2, s[60:63], s39 offen sc1
    s_cmp_lt_u32 s31, 16
    s_cbranch_scc1 L_nocb
    s_lshl_b32 s99, s30, 11
    s_lshl_b32 s100, s31, 7
    s_add_u32 s99, s99, s100
    s_add_u32 s99, s99, {WS_B - 16*128}
    s_mov_b64 exec, 0xff
    buffer_store_dwordx4 v[20:23], v2, s[60:63], s99 offen sc1
    s_mov_b64 exec, -1
    L_nocb:
    s_cmp_lt_i32 s98, 0
    s_cbranch_scc1 L_nocc
    s_lshl_b32 s99, s98, 11
    s_add_u32 s99, s99, {WS_C}
    buffer_store_dwordx4 v[20:23], v2, s[60:63], s99 offen sc1
    buffer_store_dwordx4 v[20:23], v2, s[60:63], s99 offen offset:1024 sc1
    L_nocc:
    s_lshl_b32 s99, s30, 5
    v_mov_b32 v24, s99
    v_mov_b32 v25, 1
    s_waitcnt vmcnt(0)
    s_mov_b64 exec, 1
    global_atomic_add v24, v25, s[26:27] sc1
    s_mov_b64 exec, -1
    L_noclear:
    """)
    a.merge(st)
    for t in range(8):
        if t: I(f"s_add_u32 s37, s37, 0x8000")
        I(f"buffer_load_dwordx4 v[{WQ+4*t}:{WQ+4*t+3}], v3, s[56:59], s37 offen nt")
        I(f"buffer_load_dwordx4 v[{K+4*t}:{K+4*t+3}], v2, s[48:51], s{40+t} offen nt")
    I("s_setprio 0")
    stamp()
    I("s_waitcnt vmcnt(16)")
    for i in range(4):
        I(f"v_lshlrev_b32 v{20+2*i}, 16, v{8+i}")
        I(f"v_and_b32 v{21+2*i}, 0xffff0000, v{8+i}")
    M("""
    v_add_f32 v8, v20, v21
    v_add_f32 v9, v22, v23
    v_add_f32 v10, v24, v25
    v_add_f32 v11, v26, v27
    v_add_f32 v8, v8, v9
    v_add_f32 v10, v10, v11
    v_add_f32 v8, v8, v10
    """)
    wave_sum_to_sgpr([8], [99])
    I(f"v_mov_b32 v8, {f32bits(1.0/512):#x}")
    I("v_mul_f32 v8, s99, v8")
    for i in range(8): I(f"v_sub_f32 v{20+i}, v{20+i}, v8")
    I("v_mul_f32 v9, v20, v20")
    I("v_mul_f32 v10, v21, v21")
    for i in range(2, 8): I(f"v_fmac_f32 v{9+(i&1)}, v{20+i}, v{20+i}")
    I("v_add_f32 v9, v9, v10")
    wave_sum_to_sgpr([9], [99])
    I(f"v_mov_b32 v9, {f32bits(1.0/512):#x}")
    I("v_mul_f32 v9, s99, v9")
    ln_finish(8, 9, 10, 11)
    I("v_lshlrev_b32 v12, 16, v12")
    I("v_sub_f32 v12, v12, v8")
    bf16r(12, 12)
    I("v_mul_f32 v12, v12, v9")
    I("v_cvt_pk_bf16_f32 v12, v12, v12")
    for t in range(8):
        s = 16 + 4 * (t & 1)
        for r in range(4):
            I(f"v_and_b32_dpp v{s+r}, v12, v{4+r} row_newbcast:{t} {DPP}")
        I(f"s_waitcnt vmcnt({15-2*t})")
        I(f"v_mfma_f32_16x16x32_bf16 v[24:27], v[{s}:{s+3}], v[{WQ+4*t}:{WQ+4*t+3}], " + ("0" if t == 0 else "v[24:27]"))
    M(f"""
    v_and_b32 v13, 15, v1
    v_lshlrev_b32 v13, 3, v13
    v_lshrrev_b32 v14, 4, v1
    v_lshl_add_u32 v13, v14, 8, v13
    s_lshl_b32 s99, s3, 9
    v_add_u32 v13, s99, v13
    v_lshlrev_b32 v14, 3, v1
    v_mov_b32 v15, {L_CTR}
    v_mov_b32 v16, 1
    s_mov_b32 exec_hi, 0
    ds_write2_b64 v13, v[24:25], v[26:27] offset0:0 offset1:16
    s_waitcnt lgkmcnt(0)
    s_mov_b64 exec, 1
    ds_add_u32 v15, v16
    s_mov_b64 exec, -1
    s_waitcnt vmcnt(0)
    """)
    stamp()
    def v_issue():
        for t in range(8):
            I(f"buffer_load_dwordx4 v[{V+4*t}:{V+4*t+3}], v2, s[52:55], s{40+t} offen nt")
    if late_scores:
        I("s_cmp_ge_u32 s3, 8")
        I("s_cbranch_scc1 L_vlate")
        st = a.save()
        v_issue()
        a.label("L_vlate"); a.merge(st)
    else:
        v_issue()
    stamp()
    M(f"""
    s_mov_b32 s100, {SPIN_MAX}
    L_s1:
    ds_read_b32 v16, v15
    s_sub_u32 s100, s100, 1
    s_cbranch_scc1 L_s1done
    s_waitcnt lgkmcnt(0)
    v_readfirstlane_b32 s99, v16
    s_cmp_ge_u32 s99, 16
    s_cbranch_scc1 L_s1done
    s_sleep 2
    s_branch L_s1
    L_s1done:
    """)
    stamp()
    for i in range(16):
        I(f"ds_read_b64 v[{WQ+2*i}:{WQ+2*i+1}], v14 offset:{512*i}")
    for i in range(8):
        I(f"s_waitcnt lgkmcnt({14-2*i})")
        I(f"v_pk_add_f32 v[{WQ+4*i}:{WQ+4*i+1}], v[{WQ+4*i}:{WQ+4*i+1}], v[{WQ+4*i+2}:{WQ+4*i+3}]")
    for step in (4, 8, 16):
        for i in range(0, 32, 2*step):
            I(f"v_pk_add_f32 v[{WQ+i}:{WQ+i+1}], v[{WQ+i}:{WQ+i+1}], v[{WQ+i+step}:{WQ+i+step+1}]")
    M(f"""
    v_cvt_pk_bf16_f32 v28, v{WQ}, v{WQ+1}
    v_cvt_pk_bf16_f32 v29, v{WQ}, v{WQ+1}
    """)
    for t in range(8): I(f"v_mov_b32 v{WQ+t}, 0")
    M("""
    v_permlane16_swap_b32 v28, v29
    v_mov_b32 v30, v28
    v_mov_b32 v31, v29
    v_permlane32_swap_b32 v28, v30
    v_permlane32_swap_b32 v29, v31
    """)
    for r in range(4):
        for t in range(8):
            I(f"v_dot2c_f32_bf16 v{WQ+t}, v{K+4*t+r}, v{28+r}")
    for i in range(4):
        I(f"v_add_f32_dpp v{WQ+8+i}, v{WQ+i}, v{WQ+i} row_ror:8 row_mask:0xf bank_mask:0x3")
    for i in range(4):
        I(f"v_add_f32_dpp v{WQ+8+i}, v{WQ+4+i}, v{WQ+4+i} row_ror:8 row_mask:0xf bank_mask:0xc")
    for i in range(2):
        I(f"v_add_f32_dpp v{8+i}, v{WQ+8+i}, v{WQ+8+i} row_half_mirror row_mask:0xf bank_mask:0x5")
    for i in range(2):
        I(f"v_add_f32_dpp v{8+i}, v{WQ+10+i}, v{WQ+10+i} row_half_mirror row_mask:0xf bank_mask:0xa")
    for ctl in ("quad_perm:[1,0,3,2]", "quad_perm:[2,3,0,1]"):
        for i in range(2):
            I(f"v_add_f32_dpp v{8+i}, v{8+i}, v{8+i} {ctl} {DPP}")
    M(f"""
    v_cvt_pk_bf16_f32 v10, v8, v9
    v_lshlrev_b32 v8, 16, v10
    v_and_b32 v9, 0xffff0000, v10
    v_mul_f32 v8, {SCALE:#x}, v8
    v_mul_f32 v9, {SCALE:#x}, v9
    v_cvt_pk_bf16_f32 v10, v8, v9
    v_lshlrev_b32 v8, 16, v10
    v_and_b32 v9, 0xffff0000, v10
    v_max_f32 v10, v8, v9
    v_max_f32_dpp v10, v10, v10 row_half_mirror {DPP}
    v_max_f32_dpp v10, v10, v10 row_mirror {DPP}
    s_mov_b32 exec_lo, 0x00010001
    s_mov_b32 exec_hi, 0x00010001
    ds_max_f32 v15, v10 offset:4
    s_mov_b64 exec, -1
    """)
    if late_scores:
        I("s_cmp_lt_u32 s3, 8")
        I("s_cbranch_scc1 L_vdone")
        st = a.save()
        v_issue()
        a.label("L_vdone"); a.merge(st)
    I("s_waitcnt lgkmcnt(0)")
    stamp()
    I("s_barrier")
    stamp()
    I("ds_read_b32 v10, v15 offset:4")
    I("s_cmp_ge_u32 s31, 16")
    I("s_cbranch_scc1 L_role_wo")
    st_wo = a.save()
    I("s_cmp_ge_i32 s98, 0")
    I("s_cbranch_scc1 L_role_ffn")
    st_ffn = a.save()

    SEL = WQ
    def pv_and_publish(nw, tag):
        M(f"""
        s_waitcnt lgkmcnt(0)
        v_sub_f32 v8, v8, v10
        v_sub_f32 v9, v9, v10
        v_mul_f32 v8, {LOG2E:#x}, v8
        v_mul_f32 v9, {LOG2E:#x}, v9
        v_exp_f32 v8, v8
        v_exp_f32 v9, v9
        v_cvt_pk_bf16_f32 v16, v8, v8
        v_cvt_pk_bf16_f32 v17, v9, v9
        v_add_f32 v8, v8, v9
        """)
        for t in range(8):
            for r in range(4):
                I(f"v_and_b32_dpp v{SEL+4*t+r}, v{16+(t&1)}, v{4+r} row_newbcast:{4*(t>>1)} {DPP}")
            if t == 0: I(f"v_add_f32_dpp v8, v8, v8 row_half_mirror {DPP}")
            if t == 1: I(f"v_add_f32_dpp v8, v8, v8 row_mirror {DPP}")
            if t == 2: I(f"v_add_f32_dpp v8, v8, v8 row_bcast:15 row_mask:0xa bank_mask:0xf")
            if t == 3: I(f"v_add_f32_dpp v8, v8, v8 row_bcast:31 row_mask:0xc bank_mask:0xf")
        M(f"""
        s_lshl_b32 s99, s3, 2
        v_mov_b32 v9, s99
        s_mov_b32 exec_lo, 0
        s_mov_b32 exec_hi, 0x80000000
        ds_write_b32 v9, v8 offset:{L_LSUM}
        s_mov_b64 exec, -1
        """)
        M(f"""
        v_lshrrev_b32 v11, 4, v1
        v_lshlrev_b32 v11, 11, v11
        v_and_b32 v9, 15, v1
        v_lshl_add_u32 v11, v9, 3, v11
        s_lshl_b32 s99, s3, 7
        v_add_u32 v11, s99, v11
        v_lshrrev_b32 v16, 5, v1
        v_lshl_add_u32 v9, v9, 1, v16
        v_lshl_add_u32 v9, v9, 2, s99
        """)
        stamp_at(7)
        for t in range(8):
            I(f"s_waitcnt vmcnt({nw+7-t})")
            I(f"v_mfma_f32_16x16x32_bf16 v[24:27], v[{SEL+4*t}:{SEL+4*t+3}], v[{V+4*t}:{V+4*t+3}], " + ("0" if t == 0 else "v[24:27]"))
        stamp_at(8)
        M(f"""
        s_mov_b32 exec_hi, 0
        ds_write2_b64 v13, v[24:25], v[26:27] offset0:0 offset1:16
        s_mov_b64 exec, -1
        s_waitcnt lgkmcnt(0)
        s_barrier
        s_cmp_gt_u32 s3, 4
        s_cbranch_scc1 L_pub_done_{tag}
        """)
        st1 = a.save()
        I("s_cmp_eq_u32 s3, 4")
        I(f"s_cbranch_scc1 L_pub_ml_{tag}")
        st2 = a.save()
        for i in range(4):
            I(f"ds_read_b64 v[{16+2*i}:{17+2*i}], v11 offset:{512*i}")
        M(f"""
        s_waitcnt lgkmcnt(2)
        v_pk_add_f32 v[16:17], v[16:17], v[18:19]
        s_waitcnt lgkmcnt(0)
        v_pk_add_f32 v[20:21], v[20:21], v[22:23]
        v_pk_add_f32 v[16:17], v[16:17], v[20:21]
        v_permlane32_swap_b32 v16, v17
        v_add_f32 v16, v16, v17
        v_mov_b32 v17, v16
        v_permlane16_swap_b32 v16, v17
        v_add_f32 v16, v16, v17
        v_min_u32 v16, -2, v16
        s_mov_b32 exec_lo, 0xffff
        s_mov_b32 exec_hi, 0xffff
        buffer_store_dword v16, v9, s[60:63], s39 offen sc1
        s_mov_b64 exec, -1
        s_branch L_pub_done_{tag}
        """)
        st3 = a.save()
        a.label(f"L_pub_ml_{tag}"); a.restore(st2)
        M(f"""
        v_and_b32 v16, 15, v1
        v_lshlrev_b32 v16, 2, v16
        ds_read_b32 v17, v16 offset:{L_LSUM}
        v_min_u32 v16, -2, v10
        s_waitcnt lgkmcnt(0)
        """)
        row_allreduce("v_add_f32", [17])
        M(f"""
        v_min_u32 v17, -2, v17
        s_mov_b64 exec, 1
        buffer_store_dwordx2 v[16:17], off, s[60:63], s39 offset:512 sc1
        s_mov_b64 exec, -1
        """)
        a.label(f"L_pub_done_{tag}"); a.merge(st1); a.merge(st3)
        stamp_at(9)

    def ctr_load(vd, vt):
        I(f"v_and_b32 v{vt}, 7, v1")
        I(f"v_lshlrev_b32 v{vt}, 5, v{vt}")
        I(f"global_load_dword v{vd}, v{vt}, s[26:27] sc1")

    def ctr_check(vd, vt, tag):
        M(f"""
        s_mov_b32 s100, {SPIN_MAX}
        L_ctr_{tag}:
        v_cmp_ne_u32 vcc, 32, v{vd}
        s_cbranch_vccz L_ctr_ok_{tag}
        s_sub_u32 s100, s100, 1
        s_cbranch_scc1 L_ctr_ok_{tag}
        s_sleep 4
        global_load_dword v{vd}, v{vt}, s[26:27] sc1
        s_waitcnt vmcnt(0)
        s_branch L_ctr_{tag}
        L_ctr_ok_{tag}:
        """)

    pv_and_publish(0, "p")
    finish()

    a.label("L_role_wo"); a.restore(st_wo)
    W0 = K
    M(f"""
    v_and_b32 v18, 7, v1
    v_lshrrev_b32 v19, 3, v1
    v_lshlrev_b32 v20, 14, v18
    v_lshl_add_u32 v20, v19, 3, v20
    s_lshl_b32 s99, s30, 19
    s_lshr_b32 s100, s3, 2
    s_lshl_b32 s100, s100, 17
    s_add_u32 s99, s99, s100
    s_and_b32 s100, s3, 3
    s_lshl_b32 s100, s100, 11
    s_add_u32 s99, s99, s100
    s_lshl_b32 s100, s31, 6
    s_add_u32 s99, s99, s100
    s_sub_u32 s99, s99, 1024
    s_add_u32 s100, s99, 8192
    """)
    srd(56, 12, 13, 0x400000)
    M(f"""
    buffer_load_dwordx2 v[{W0}:{W0+1}], v20, s[56:59], s99 offen nt
    buffer_load_dwordx2 v[{W0+2}:{W0+3}], v20, s[56:59], s99 offen offset:1024 nt
    buffer_load_dwordx2 v[{W0+4}:{W0+5}], v20, s[56:59], s100 offen nt
    buffer_load_dwordx2 v[{W0+6}:{W0+7}], v20, s[56:59], s100 offen offset:1024 nt
    """)
    ctr_load(W0+16, W0+17)
    M(f"""
    v_lshlrev_b32 v{W0+18}, 10, v19
    v_lshl_add_u32 v{W0+19}, v18, 4, v{W0+18}
    s_lshl_b32 s96, s30, 15
    s_lshr_b32 s97, s3, 2
    s_lshl_b32 s97, s97, 13
    s_add_u32 s96, s96, s97
    s_and_b32 s97, s3, 3
    s_lshl_b32 s97, s97, 7
    s_add_u32 s97, s97, s96
    """)
    pv_and_publish(5, "w")
    M(f"""
    s_mov_b32 s36, 0x05040100
    s_mov_b32 s38, 0x07060302
    s_waitcnt vmcnt(0)
    """)
    ctr_check(W0+16, W0+17, "w")
    P = V
    M(f"""
    buffer_load_dwordx4 v[{P}:{P+3}], v{W0+19}, s[60:63], s97 offen sc1
    buffer_load_dwordx2 v[{P+4}:{P+5}], v{W0+18}, s[60:63], s96 offen offset:512 sc1
    """)
    for pr in range(2):
        for dw in range(2):
            lo, hi = W0 + 4*pr + dw, W0 + 4*pr + 2 + dw
            I(f"v_perm_b32 v{W0+8+4*pr+2*dw}, v{hi}, v{lo}, s36")
            I(f"v_perm_b32 v{W0+8+4*pr+2*dw+1}, v{hi}, v{lo}, s38")
    M(f"""
    s_lshl_b32 s99, s3, 7
    v_lshrrev_b32 v19, 3, v1
    v_lshl_add_u32 v18, v19, 4, s99
    v_and_b32 v19, 31, v1
    v_lshlrev_b32 v19, 2, v19
    v_lshrrev_b32 v20, 5, v1
    v_lshl_add_u32 v20, v20, 10, v19
    s_lshl_b32 s99, s30, 11
    s_lshl_b32 s101, s31, 7
    s_add_u32 s99, s99, s101
    s_add_u32 s99, s99, {WS_B - 16*128}
    s_mov_b32 s100, {SPIN_MAX}
    L_pollA:
    s_waitcnt vmcnt(0)
    v_max3_u32 v16, v{P}, v{P+1}, v{P+2}
    v_max3_u32 v17, v{P+3}, v{P+4}, v{P+5}
    v_max_u32 v16, v16, v17
    v_cmp_eq_u32 vcc, -1, v16
    s_cbranch_vccz L_pollA_ok
    s_sub_u32 s100, s100, 1
    s_cbranch_scc1 L_pollA_ok
    """)
    if sleep: I(f"s_sleep {sleep}")
    M(f"""
    buffer_load_dwordx4 v[{P}:{P+3}], v{W0+19}, s[60:63], s97 offen sc1
    buffer_load_dwordx2 v[{P+4}:{P+5}], v{W0+18}, s[60:63], s96 offen offset:512 sc1
    s_branch L_pollA
    L_pollA_ok:
    """)
    stamp_at(10)
    M(f"""
    v_max_f32_dpp v16, v{P+4}, v{P+4} row_ror:8 {DPP}
    v_mov_b32 v17, v16
    v_permlane16_swap_b32 v16, v17
    v_max_f32 v16, v16, v17
    v_mov_b32 v17, v16
    v_permlane32_swap_b32 v16, v17
    v_max_f32 v16, v16, v17
    v_sub_f32 v16, v{P+4}, v16
    v_mul_f32 v16, {LOG2E:#x}, v16
    v_exp_f32 v16, v16
    v_mul_f32 v{P+5}, v{P+5}, v16
    """)
    for i in range(4): I(f"v_mul_f32 v{P+i}, v{P+i}, v16")
    order = [P+5, P, P+1, P+2, P+3]
    T = P + 8
    for r in order: I(f"v_add_f32_dpp v{r}, v{r}, v{r} row_ror:8 {DPP}")
    for sw in ("v_permlane16_swap_b32", "v_permlane32_swap_b32"):
        for k, r in enumerate(order): I(f"v_mov_b32 v{T+k}, v{r}")
        for k, r in enumerate(order): I(f"{sw} v{r}, v{T+k}")
        for k, r in enumerate(order): I(f"v_add_f32 v{r}, v{r}, v{T+k}")
    I(f"v_rcp_f32 v16, v{P+5}")
    for i in range(4): I(f"v_mul_f32 v{P+i}, v{P+i}, v16")
    I(f"v_cvt_pk_bf16_f32 v16, v{P}, v{P+1}")
    I(f"v_cvt_pk_bf16_f32 v17, v{P+2}, v{P+3}")
    for c in range(4): I(f"v_dot2_f32_bf16 v{24+c}, v16, v{W0+8+c}, 0")
    for c in range(4): I(f"v_dot2_f32_bf16 v{24+c}, v17, v{W0+12+c}, v{24+c}")
    for ctl in ("quad_perm:[1,0,3,2]", "quad_perm:[2,3,0,1]", "row_half_mirror"):
        for c in range(4): I(f"v_add_f32_dpp v{24+c}, v{24+c}, v{24+c} {ctl} {DPP}")
    M(f"""
    s_mov_b32 exec_lo, 0x01010101
    s_mov_b32 exec_hi, 0x01010101
    ds_write_b128 v18, v[24:27] offset:{L_Z}
    s_mov_b64 exec, -1
    s_waitcnt lgkmcnt(0)
    s_barrier
    s_cmp_lg_u32 s3, 0
    s_cbranch_scc1 L_wo_done
    """)
    st = a.save()
    for i in range(8): I(f"ds_read_b32 v{24+i}, v20 offset:{L_Z+128*i}")
    for i in range(4):
        I(f"s_waitcnt lgkmcnt({6-2*i})")
        I(f"v_add_f32 v{24+2*i}, v{24+2*i}, v{25+2*i}")
    M(f"""
    v_add_f32 v24, v24, v26
    v_add_f32 v28, v28, v30
    v_add_f32 v24, v24, v28
    v_mov_b32 v25, v24
    v_permlane32_swap_b32 v24, v25
    v_add_f32 v24, v24, v25
    v_min_u32 v24, -2, v24
    s_mov_b32 exec_hi, 0
    buffer_store_dword v24, v19, s[60:63], s99 offen sc1
    s_mov_b64 exec, -1
    """)
    a.label("L_wo_done"); a.merge(st)
    stamp_at(11)
    finish()

    a.label("L_role_ffn"); a.restore(st_ffn)
    W1 = K
    W2 = K + 8
    X = K + 16
    M(f"""
    v_lshrrev_b32 v18, 2, v0
    v_and_b32 v19, 3, v0
    s_movk_i32 s99, 2752
    v_mul_lo_u32 v20, v18, s99
    v_lshl_add_u32 v20, v19, 4, v20
    s_lshl_b32 s99, s98, 6
    s_add_u32 s100, s99, {256*2752}
    """)
    srd(56, 16, 17, 512*2752)
    srd(48, 20, 21, 1376*1024)
    M(f"""
    buffer_load_dwordx4 v[{W1}:{W1+3}], v20, s[56:59], s99 offen nt
    buffer_load_dwordx4 v[{W1+4}:{W1+7}], v20, s[56:59], s100 offen nt
    v_lshrrev_b32 v20, 4, v1
    v_lshlrev_b32 v20, 13, v20
    v_and_b32 v21, 15, v1
    v_lshl_add_u32 v20, v21, 2, v20
    s_lshl_b32 s99, s98, 15
    s_lshl_b32 s100, s3, 6
    s_add_u32 s99, s99, s100
    s_add_u32 s100, s99, 4096
    """)
    for i in range(8):
        I(f"buffer_load_dword v{W2+i}, v20, s[48:51], s{99 if i < 4 else 100} offen offset:{1024*(i&3)} nt")
    M(f"""
    v_and_b32 v20, 7, v1
    v_lshrrev_b32 v21, 4, v1
    v_lshl_add_u32 v20, v20, 2, v21
    s_lshl_b32 s99, s3, 5
    v_add_lshl_u32 v{X+5}, v20, s99, 1
    global_load_ushort v{X}, v{X+5}, s[4:5]
    global_load_ushort v{X+2}, v{X+5}, s[22:23]
    v_lshrrev_b32 v20, 5, v1
    s_lshl_b32 s99, s98, 5
    s_lshl_b32 s100, s3, 1
    s_add_u32 s99, s99, s100
    v_add_lshl_u32 v20, v20, s99, 1
    global_load_ushort v{X+1}, v20, s[18:19]
    """)
    ctr_load(X+3, X+4)
    M(f"""
    v_mul_u32_u24 v{X+6}, {4*516}, v19
    v_add_lshl_u32 v{X+6}, v{X+6}, v18, 2
    """)
    pv_and_publish(14, "f")
    M(f"""
    s_mov_b32 s36, 0x05040100
    s_mov_b32 s38, 0x07060302
    s_waitcnt vmcnt(0)
    """)
    for i in range(4):
        I(f"ds_write_b32 v{X+6}, v{W1+i} offset:{L_T+2064*i}")
        I(f"ds_write_b32 v{X+6}, v{W1+4+i} offset:{L_T+2064*i+1024}")
    ctr_check(X+3, X+4, "f")
    P = V
    W2P = V + 8
    W1P = V + 16
    M(f"""
    v_lshrrev_b32 v18, 3, v1
    v_lshlrev_b32 v18, 11, v18
    v_and_b32 v19, 7, v1
    v_lshl_add_u32 v18, v19, 4, v18
    s_lshl_b32 s96, s3, 7
    s_add_u32 s97, s96, {WS_C}
    s_add_u32 s96, s96, {WS_B}
    s_mul_i32 s99, s3, 2064
    v_add_u32 v19, s99, v2
    s_waitcnt lgkmcnt(0)
    s_barrier
    ds_read_b128 v[{W1}:{W1+3}], v19 offset:{L_T}
    ds_read_b128 v[{W1+4}:{W1+7}], v19 offset:{L_T+1024}
    buffer_load_dwordx4 v[{P}:{P+3}], v18, s[60:63], s96 offen sc1
    """)
    for i in range(4):
        I(f"v_perm_b32 v{W2P+i}, v{W2+2*i+1}, v{W2+2*i}, s36")
        I(f"v_perm_b32 v{W2P+4+i}, v{W2+2*i+1}, v{W2+2*i}, s38")
    I(f"v_lshlrev_b32 v{X}, 16, v{X}")
    I(f"v_lshlrev_b32 v{X+1}, 16, v{X+1}")
    I(f"v_lshlrev_b32 v{X+2}, 16, v{X+2}")
    I(f"v_lshlrev_b32 v{X+6}, 1, v{X+5}")
    I("s_waitcnt lgkmcnt(0)")
    for i in range(4):
        I(f"v_perm_b32 v{W1P+i}, v{W1+2*i+1}, v{W1+2*i}, s36")
        I(f"v_perm_b32 v{W1P+4+i}, v{W1+2*i+1}, v{W1+2*i}, s38")
    M(f"""
    v_lshrrev_b32 v22, 5, v1
    s_lshl_b32 s99, s3, 1
    v_add_lshl_u32 v20, v22, s99, 1
    v_lshrrev_b32 v21, 4, v1
    v_lshlrev_b32 v21, 4, v21
    v_and_b32 v23, 15, v1
    v_lshl_add_u32 v22, v23, 1, v22
    v_lshlrev_b32 v22, 2, v22
    s_lshl_b32 s101, s98, 11
    s_add_u32 s101, s101, s97
    v_mov_b32 v23, 0
    s_mov_b32 s100, {SPIN_MAX}
    L_pollB:
    s_waitcnt vmcnt(0)
    v_max3_u32 v16, v{P}, v{P+1}, v{P+2}
    v_max_u32 v16, v16, v{P+3}
    v_cmp_eq_u32 vcc, -1, v16
    s_cbranch_vccz L_pollB_ok
    s_sub_u32 s100, s100, 1
    s_cbranch_scc1 L_pollB_ok
    """)
    if sleep: I(f"s_sleep {sleep}")
    M(f"""
    buffer_load_dwordx4 v[{P}:{P+3}], v18, s[60:63], s96 offen sc1
    s_branch L_pollB
    L_pollB_ok:
    """)
    stamp_at(10)
    reduce8_scatter(P)
    bf16r(P, P)
    I(f"v_add_f32 v{P}, v{P}, v{X}")
    bf16r(X, P)
    M(f"""
    ds_write_b32 v{X+6}, v{X} offset:{L_H}
    s_waitcnt lgkmcnt(0)
    s_barrier
    ds_read_b32 v16, v23 offset:{L_H}
    ds_read_b128 v[24:27], v2 offset:{L_H}
    ds_read_b128 v[28:31], v2 offset:{L_H+1024}
    s_waitcnt lgkmcnt(1)
    """)
    D = WQ
    for i in range(4): I(f"v_sub_f32 v{D+i}, v{24+i}, v16")
    I("s_waitcnt lgkmcnt(0)")
    for i in range(4, 8): I(f"v_sub_f32 v{D+i}, v{24+i}, v16")
    M(f"""
    v_add_f32 v8, v{D}, v{D+1}
    v_mul_f32 v9, v{D}, v{D}
    v_add_f32 v10, v{D+2}, v{D+3}
    v_mul_f32 v11, v{D+1}, v{D+1}
    v_add_f32 v8, v8, v{D+4}
    v_fmac_f32 v9, v{D+2}, v{D+2}
    v_add_f32 v10, v10, v{D+5}
    v_fmac_f32 v11, v{D+3}, v{D+3}
    v_add_f32 v8, v8, v{D+6}
    v_fmac_f32 v9, v{D+4}, v{D+4}
    v_add_f32 v10, v10, v{D+7}
    v_fmac_f32 v11, v{D+5}, v{D+5}
    v_fmac_f32 v9, v{D+6}, v{D+6}
    v_fmac_f32 v11, v{D+7}, v{D+7}
    v_add_f32 v8, v8, v10
    v_add_f32 v9, v9, v11
    """)
    wave_sum_to_sgpr([8, 9], [36, 38])
    M(f"""
    v_mov_b32 v10, {f32bits(1.0/512):#x}
    v_mul_f32 v8, s36, v10
    v_mul_f32 v9, s38, v10
    v_fma_f32 v9, -v8, v8, v9
    v_max_f32 v9, 0, v9
    v_add_f32 v8, v8, v16
    """)
    ln_finish(8, 9, 10, 11)
    for i in range(8): I(f"v_sub_f32 v{D+i}, v{24+i}, v8")
    for i in range(4): I(f"v_cvt_pk_bf16_f32 v{24+i}, v{D+2*i}, v{D+2*i+1}")
    for i in range(4):
        I(f"v_lshlrev_b32 v{D+2*i}, 16, v{24+i}")
        I(f"v_and_b32 v{D+2*i+1}, 0xffff0000, v{24+i}")
    for i in range(8): I(f"v_mul_f32 v{D+i}, v{D+i}, v9")
    for i in range(4): I(f"v_cvt_pk_bf16_f32 v{24+i}, v{D+2*i}, v{D+2*i+1}")
    for i in range(4):
        I(f"v_dot2_f32_bf16 v8, v{24+i}, v{W1P+i}, " + ("0" if i == 0 else "v8"))
        I(f"v_dot2_f32_bf16 v9, v{24+i}, v{W1P+4+i}, " + ("0" if i == 0 else "v9"))
    I("v_permlane32_swap_b32 v8, v9")
    I("v_add_f32 v8, v8, v9")
    row_allreduce("v_add_f32", [8])
    I("v_add_f32_dpp v8, v8, v8 row_bcast:15 row_mask:0xa bank_mask:0xf")
    bf16r(8, 8)
    I(f"v_add_f32 v8, v8, v{X+1}")
    bf16r(8, 8)
    c0 = -2.0 * 0.7978845608028654 * 1.4426950408889634
    M(f"""
    v_mul_f32 v9, v8, v8
    v_mov_b32 v10, {f32bits(c0):#x}
    v_fmac_f32 v10, {f32bits(c0*0.044715):#x}, v9
    v_mul_f32 v9, v8, v10
    v_exp_f32 v9, v9
    v_add_f32 v9, 1.0, v9
    v_rcp_f32 v9, v9
    v_mul_f32 v8, v8, v9
    v_cvt_pk_bf16_f32 v8, v8, v8
    s_mov_b32 exec_lo, 0x10000
    s_mov_b32 exec_hi, 0x10000
    ds_write_b16 v20, v8 offset:{L_G}
    s_mov_b64 exec, -1
    s_waitcnt lgkmcnt(0)
    s_barrier
    ds_read_b128 v[24:27], v21 offset:{L_G}
    s_waitcnt lgkmcnt(0)
    """)
    for i in range(4):
        I(f"v_dot2_f32_bf16 v8, v{24+i}, v{W2P+i}, " + ("0" if i == 0 else "v8"))
        I(f"v_dot2_f32_bf16 v9, v{24+i}, v{W2P+4+i}, " + ("0" if i == 0 else "v9"))
    M(f"""
    v_permlane32_swap_b32 v8, v9
    v_add_f32 v8, v8, v9
    v_mov_b32 v9, v8
    v_permlane16_swap_b32 v8, v9
    v_add_f32 v8, v8, v9
    v_min_u32 v8, -2, v8
    s_mov_b32 exec_lo, 0xffff
    s_mov_b32 exec_hi, 0xffff
    buffer_store_dword v8, v22, s[60:63], s101 offen sc1
    s_mov_b64 exec, -1
    """)
    stamp_at(11)
    M(f"""
    s_lshl_b32 s99, s30, 1
    s_add_u32 s99, s99, s31
    s_cmp_lt_u32 s31, 2
    s_cselect_b32 s99, s99, -1
    s_cmp_lg_u32 s99, s3
    s_cbranch_scc1 L_ffn_done
    """)
    st = a.save()
    Q = WQ
    for i in range(4): I(f"v_mov_b32 v{Q+20+i}, 0")
    M(f"""
    s_mov_b32 s100, {SPIN_MAX}
    L_pollC:
    """)
    for i in range(6):
        if i: I(f"s_add_u32 s99, s97, {16384*i}")
        if i == 5: I("s_mov_b64 exec, 0xffffff")
        I(f"buffer_load_dwordx4 v[{Q+4*i}:{Q+4*i+3}], v18, s[60:63], s{99 if i else 97} offen sc1")
    I("s_mov_b64 exec, -1")
    I("s_waitcnt vmcnt(4)")
    I(f"v_max3_u32 v16, v{Q}, v{Q+1}, v{Q+2}")
    I(f"v_max3_u32 v17, v{Q+3}, v{Q+4}, v{Q+5}")
    I(f"v_max3_u32 v16, v16, v{Q+6}, v{Q+7}")
    I(f"v_pk_add_f32 v[24:25], v[{Q}:{Q+1}], v[{Q+4}:{Q+5}]")
    I(f"v_pk_add_f32 v[26:27], v[{Q+2}:{Q+3}], v[{Q+6}:{Q+7}]")
    for i in range(2, 6):
        I(f"s_waitcnt vmcnt({5-i})")
        I(f"v_max3_u32 v17, v17, v{Q+4*i}, v{Q+4*i+1}")
        I(f"v_max3_u32 v16, v16, v{Q+4*i+2}, v{Q+4*i+3}")
        I(f"v_pk_add_f32 v[24:25], v[24:25], v[{Q+4*i}:{Q+4*i+1}]")
        I(f"v_pk_add_f32 v[26:27], v[26:27], v[{Q+4*i+2}:{Q+4*i+3}]")
    M(f"""
    v_max_u32 v16, v16, v17
    v_cmp_eq_u32 vcc, -1, v16
    s_cbranch_vccz L_pollC_ok
    s_sub_u32 s100, s100, 1
    s_cbranch_scc0 L_pollC
    L_pollC_ok:
    """)
    stamp_at(12)
    reduce8_scatter(24)
    bf16r(24, 24)
    I(f"v_add_f32 v24, v24, v{X+2}")
    bf16r(24, 24)
    I(f"v_add_f32 v24, v24, v{X}")
    I("v_cvt_pk_bf16_f32 v24, v24, v24")
    M(f"""
    s_mov_b32 exec_lo, 0x00ff00ff
    s_mov_b32 exec_hi, 0x00ff00ff
    global_store_short v{X+5}, v24, s[24:25]
    s_mov_b64 exec, -1
    """)
    stamp_at(13)
    a.label("L_ffn_done"); a.merge(st)
    finish()
    if stamps:
        a.label("L_stamps")
        I("s_waitcnt vmcnt(0)")
        stamp_at(14)
        I("s_getreg_b32 s94, hwreg(HW_REG_XCC_ID)")
        I("s_lshl_b32 s99, s2, 4")
        I("s_add_u32 s99, s99, s3")
        I("s_lshl_b32 s99, s99, 6")
        I(f"s_add_u32 s99, s99, {WS_STAMP}")
        I("v_mov_b32 v6, s99")
        I("s_mov_b64 exec, 1")
        for g in range(4):
            for k in range(4): I(f"v_mov_b32 v{8+4*g+k}, s{64+2*(4*g+k)}")
            I(f"global_store_dwordx4 v6, v[{8+4*g}:{11+4*g}], s[28:29] offset:{16*g}")
    a.label("L_end")
    I("s_endpgm")
    a.raw('.section .rodata,"a"')
    a.raw(".p2align 6")
    a.raw(f".amdhsa_kernel {NAME}_kernel")
    a.raw("  .amdhsa_next_free_vgpr 128")
    a.raw("  .amdhsa_next_free_sgpr 102")
    a.raw("  .amdhsa_accum_offset 128")
    a.raw("  .amdhsa_group_segment_fixed_size 0")
    a.raw("  .amdhsa_kernarg_size 104")
    a.raw("  .amdhsa_user_sgpr_count 2")
    a.raw("  .amdhsa_user_sgpr_kernarg_segment_ptr 1")
    a.raw("  .amdhsa_system_sgpr_workgroup_id_x 1")
    a.raw("  .amdhsa_float_denorm_mode_32 3")
    a.raw(".end_amdhsa_kernel")
    assert a.maxv < 128
    return a.text()

if __name__ == "__main__":
    open(f"cdna_kernels/{NAME}.s", "w").write(gen())
    open("k_stamp.s", "w").write(gen(stamps=True))
```
